```python
import torch

def _softmax(x, axis=-1):
    return torch.softmax(x, dim=axis)

def _gelu(x):
    return torch.nn.functional.gelu(x, approximate='tanh')

def _silu(x):
    return torch.nn.functional.silu(x)

def _sigmoid(x):
    return torch.sigmoid(x)

def _layernorm(x, axis=-1, eps=1e-05):
    m = x.mean(dim=axis, keepdim=True)
    v = x.var(dim=axis, keepdim=True, unbiased=False)
    return (x - m) / torch.sqrt(v + eps)

def _scatter_add(tgt, idx, src, axis=0):
    return tgt.clone().index_add_(axis, idx, src)

def _segment_sum(src, seg, n):
    out = torch.zeros((n,) + src.shape[1:], dtype=src.dtype)
    return out.index_add_(0, seg, src)

def _pad(x, pw):
    flat = tuple((v for pair in reversed(pw) for v in pair))
    return torch.nn.functional.pad(x, flat)
kernel_name = 'adaLN_cond__sliding_local_dilated__mixer_s_mlp__prompt'

def setup_inputs():

    _w = lambda a: (lambda t: t.to(torch.bfloat16) if t.is_floating_point() else t)(torch.as_tensor(a))

    def _A_setup():
        B, S, D = (1, 2048, 512)
        return {'x': _w((lambda *s: torch.randn(*s, dtype=torch.bfloat16) * 0.05)(B, S, D)), 'wqkv': _w((lambda *s: torch.randn(*s, dtype=torch.bfloat16) * 0.05)(D, 3 * D)), 'wo': _w((lambda *s: torch.randn(*s, dtype=torch.bfloat16) * 0.05)(D, D))}
    _A_in = _A_setup()

    def _B_setup():
        B, S, D, F = (1, 2048, 512, 1792)
        return {'x': _w((lambda *s: torch.randn(*s, dtype=torch.bfloat16) * 0.05)(B, S, D)), 'w1': _w((lambda *s: torch.randn(*s, dtype=torch.bfloat16) * 3.2)(D, D) * D ** (-0.5)), 'w2': _w((lambda *s: torch.randn(*s, dtype=torch.bfloat16) * 3.2)(D, D) * D ** (-0.5)), 'w3': _w((lambda *s: torch.randn(*s, dtype=torch.bfloat16) * 3.2)(D, F) * D ** (-0.5)), 'w4': _w((lambda *s: torch.randn(*s, dtype=torch.bfloat16) * 3.2)(F, D) * F ** (-0.5))}
    _B_in = _B_setup()
    return {'A_x': _A_in['x'], 'A_wqkv': _A_in['wqkv'], 'A_wo': _A_in['wo'], 'B_x': _B_in['x'], 'B_w1': _B_in['w1'], 'B_w2': _B_in['w2'], 'B_w3': _B_in['w3'], 'B_w4': _B_in['w4'], 'c': _w((lambda *s: torch.randn(*s, dtype=torch.bfloat16) * 0.1)(1, 512) * 8.0), 'w_mod': _w((lambda *s: torch.randn(*s, dtype=torch.bfloat16) * 0.1)(512, 6 * 512) * 512 ** (-0.5) * 8.0)}

def reference(A_x, A_wqkv, A_wo, B_x, B_w1, B_w2, B_w3, B_w4, c, w_mod):

    def _A_ref(x, wqkv, wo):
        B, S, D = x.shape
        H = 32
        Dh = D // H
        W, dil = (8, 2)
        qkv = (lambda x, *d: x.permute(*d))((x @ wqkv).reshape(B, S, 3, H, Dh), 2, 0, 3, 1, 4)
        q, k, v = (qkv[0], qkv[1], qkv[2])
        scale = Dh ** (-0.5)
        pos = torch.arange(S)
        off = torch.arange(W) * dil
        idx = pos[:, None] - off[None, :]
        mask = idx >= 0
        idx_c = torch.where(mask, idx, 0).reshape(-1)
        kg = k[:, :, idx_c, :].reshape(B, H, S, W, Dh)
        vg = v[:, :, idx_c, :].reshape(B, H, S, W, Dh)
        logits = torch.einsum('bhsd,bhswd->bhsw', q, kg) * scale
        logits = torch.where(mask[None, None, :, :], logits, -1000000000.0)
        attn = _softmax(logits, axis=-1)
        o = torch.einsum('bhsw,bhswd->bhsd', attn, vg)
        return (lambda x, *d: x.permute(*d))(o, 0, 2, 1, 3).reshape(B, S, D) @ wo

    def _B_ref(x, w1, w2, w3, w4):
        B, S, D = x.shape
        h = _gelu(_layernorm(x, axis=-1) @ w1)
        c = D // 4
        g0 = _pad(h[:, :, 0 * c:1 * c], ((0, 0), (1, 0), (0, 0)))[:, :S, :]
        g1 = _pad(h[:, :, 1 * c:2 * c], ((0, 0), (0, 1), (0, 0)))[:, 1:, :]
        g2 = _pad(h[:, :, 2 * c:3 * c], ((0, 0), (2, 0), (0, 0)))[:, :S, :]
        g3 = _pad(h[:, :, 3 * c:], ((0, 0), (0, 2), (0, 0)))[:, 2:, :]
        hs = torch.concatenate([g0, g1, g2, g3], axis=-1) @ w2
        x1 = x + hs
        h2 = _gelu(_layernorm(x1, axis=-1) @ w3) @ w4
        return x1 + h2
    x = A_x
    mod = (_silu(c) @ w_mod).reshape(c.shape[0], 6, 1, -1)
    sa, ca, ga, sb, cb, gb = (mod[:, 0].clone(), mod[:, 1].clone(), mod[:, 2].clone(), mod[:, 3].clone(), mod[:, 4].clone(), mod[:, 5].clone())
    h = _layernorm(x, axis=-1) * (1 + ca) + sa
    x = x + ga * _A_ref(h, A_wqkv, A_wo)
    h = _layernorm(x, axis=-1) * (1 + cb) + sb
    x = x + gb * _B_ref(h, B_w1, B_w2, B_w3, B_w4)
    return x
```

```python
import re

TRANS = ("v_exp_f32", "v_log_f32", "v_rcp_f32", "v_rsq_f32", "v_sqrt_f32", "v_sin_f32", "v_cos_f32", "v_rcp_iflag_f32")
RMW = ("v_fmac_f32", "v_dot2c_f32_bf16", "v_pk_fmac", "v_fmac_f32_dpp")

_reg_re = re.compile(r"^(-|abs\()?\s*([vas])(?:\[(\d+):(\d+)\]|(\d+))\)?$")

def regs_of(op):
    op = op.strip()
    if op in ("vcc",): return [("s", 106), ("s", 107)]
    if op == "vcc_lo": return [("s", 106)]
    if op == "vcc_hi": return [("s", 107)]
    if op == "exec": return [("s", 126), ("s", 127)]
    if op == "m0": return [("s", 124)]
    m = _reg_re.match(op)
    if not m: return []
    k = m.group(2)
    if m.group(5) is not None:
        return [(k, int(m.group(5)))]
    return [(k, i) for i in range(int(m.group(3)), int(m.group(4)) + 1)]

def split_ops(s):
    out, depth, cur = [], 0, ""
    for ch in s:
        if ch in "[(": depth += 1
        if ch in "])": depth -= 1
        if ch == "," and depth == 0:
            out.append(cur.strip()); cur = ""
        else:
            cur += ch
    if cur.strip(): out.append(cur.strip())
    return out

class Ins:
    __slots__ = ("text", "op", "ops", "mods", "kind", "wr", "rd", "a", "b", "c", "passes", "dpp", "data")
    def __init__(self, text):
        self.text = text
        t = text.split(";")[0].strip()
        parts = t.split(None, 1)
        self.op = parts[0]
        rest = parts[1] if len(parts) > 1 else ""
        ops = split_ops(rest)
        mods = ""
        if ops:
            last = ops[-1].split(None, 1)
            if len(last) > 1 and not last[0].startswith("hwreg"):
                ops[-1] = last[0]; mods = last[1]
        self.ops, self.mods = ops, mods
        self.wr, self.rd, self.a, self.b, self.c, self.data = [], [], [], [], [], []
        self.passes = 0
        op = self.op
        self.dpp = ("_dpp" in op) or ("row_" in mods) or ("quad_perm" in mods)
        R = [regs_of(o) for o in ops]
        flat = lambda L: [x for l in L for x in l]
        if op.startswith("v_mfma"):
            self.kind = "mfma"
            self.wr = R[0]; self.a, self.b, self.c = R[1], R[2], R[3]
            self.rd = R[1] + R[2] + R[3]
            self.passes = 8 if "32x32" in op else 4
        elif op.startswith("v_"):
            self.kind = "valu"
            if op.startswith("v_permlane") and "swap" in op:
                self.wr = R[0] + R[1]; self.rd = R[0] + R[1]; self.kind = "perml"
            elif op.startswith("v_cmp"):
                self.wr = R[0]; self.rd = flat(R[1:])
            elif op.startswith("v_readfirstlane") or op.startswith("v_readlane"):
                self.wr = R[0]; self.rd = flat(R[1:]); self.kind = "rdlane"
            elif "_co_" in op:
                self.wr = R[0] + R[1]; self.rd = flat(R[2:])
            else:
                self.wr = R[0]; self.rd = flat(R[1:])
                if any(op.startswith(x) for x in RMW): self.rd = self.rd + R[0]
                if op.startswith("v_cndmask") and len(ops) == 3: self.rd += regs_of("vcc")
                if self.dpp: self.rd = self.rd + R[0]
            if any(op.startswith(x) for x in TRANS): self.kind = "trans"
            if op.startswith("v_dot"): self.kind = "dot"
        elif op.startswith("ds_"):
            self.kind = "ds"
            if op.startswith("ds_read") or op.startswith("ds_bpermute") or op.startswith("ds_swizzle") or op.startswith("ds_permute"):
                self.wr = R[0]; self.rd = flat(R[1:])
            else:
                self.rd = flat(R)
        elif op.startswith("buffer_") or op.startswith("global_"):
            self.kind = "vmem"
            lds = (" lds" in (" " + mods)) or ("_lds_" in op)
            if "load" in op and not lds:
                self.wr = R[0]; self.rd = flat(R[1:])
            else:
                self.rd = flat(R)
                if lds: self.rd = self.rd + regs_of("m0"); self.kind = "dma"
                if "store" in op and ("x4" in op or "x3" in op):
                    self.data = R[0] if op.startswith("buffer_") else R[1]
            if "atomic" in op and "sc0" in mods: self.wr = R[0]
        elif op.startswith("s_"):
            self.kind = "salu"
            if op.startswith("s_cmp") or op.startswith("s_cbranch") or op.startswith("s_branch") or op in (
                    "s_waitcnt", "s_barrier", "s_nop", "s_endpgm", "s_setprio", "s_sleep", "s_bitcmp1_b32", "s_bitcmp0_b32"):
                self.rd = flat(R)
            else:
                self.wr = R[0] if R else []; self.rd = flat(R[1:])
                if "saveexec" in op: self.wr = self.wr + regs_of("exec")
        else:
            raise ValueError("unknown instruction: " + text)

VALU_KINDS = ("valu", "trans", "perml", "rdlane", "dot")

def need(p, c):
    n = 0
    pw = set(p.wr)
    if p.kind in VALU_KINDS:
        vw = {r for r in pw if r[0] != "s"}
        sw = {r for r in pw if r[0] == "s"}
        if c.kind == "mfma" and vw & set(c.rd): n = max(n, 2)
        if c.kind == "perml" and vw & set(c.rd): n = max(n, 2)
        if c.dpp and vw & set(c.rd): n = max(n, 2)
        if c.kind == "rdlane" and vw & set(c.rd): n = max(n, 1)
        if p.kind == "trans" and c.kind in VALU_KINDS + ("mfma",) and vw & set(c.rd): n = max(n, 1)
        if p.kind == "dot" and vw & (set(c.rd) | set(c.wr)):
            n = max(n, 3)
        if sw:
            if c.kind in VALU_KINDS and sw & set(c.rd): n = max(n, 4 if c.kind == "rdlane" else 2)
            if c.kind in ("vmem", "dma") and sw & set(c.rd): n = max(n, 5)
            if c.kind == "salu" and sw & set(c.rd): n = max(n, 1)
    if p.kind == "mfma":
        big = p.passes == 8
        if c.kind == "mfma":
            if pw & (set(c.a) | set(c.b)): n = max(n, 12 if big else 8)
            if pw & set(c.c):
                if not (c.c == p.wr and c.passes == p.passes): n = max(n, 10 if big else 6)
            elif pw & set(c.wr): n = max(n, 12 if big else 8)
        elif c.kind != "salu":
            if pw & (set(c.rd) | set(c.wr)): n = max(n, 12 if big else 8)
        if c.kind in VALU_KINDS and set(p.c) & set(c.wr): n = max(n, 7 if big else 3)
    if p.kind == "salu" and ("s", 124) in pw and c.kind == "dma": n = max(n, 1)
    if p.data and set(p.data) & set(c.wr):
        n = max(n, 2 if c.kind in VALU_KINDS else 1)
    return n

WINDOW = 14

class Asm:
    def __init__(self):
        self.items = []
    def I(self, text):
        for line in text.strip().split("\n"):
            line = line.strip()
            if not line or line.startswith(";"): continue
            self.items.append(("i", Ins(line)))
    def L(self, label): self.items.append(("l", label))
    def T(self, text): self.items.append(("t", text))
    def render(self):
        out = []
        labels = {it[1]: i for i, it in enumerate(self.items) if it[0] == "l"}
        saved = {}
        hist = []
        def required(hist, c):
            n = 0
            for p, age in hist:
                k = need(p, c) - age
                if k > n: n = k
            return n
        def advance(hist, ins, states):
            hist = [(p, a + states) for p, a in hist if a + states < WINDOW]
            if ins is not None: hist.append((ins, 0))
            return hist
        def pad(n):
            nonlocal hist
            while n > 0:
                k = min(n, 16)
                out.append("    s_nop %d" % (k - 1))
                hist = advance(hist, None, k)
                n -= k
        for idx, it in enumerate(self.items):
            if it[0] == "t":
                out.append(it[1])
                if it[1].strip().startswith(".p2align 8"): hist = []
                continue
            if it[0] == "l":
                for h in saved.get(it[1], []): hist = hist + h
                out.append(it[1] + ":")
                continue
            ins = it[1]
            pad(required(hist, ins))
            isbr = ins.op.startswith("s_cbranch") or ins.op == "s_branch"
            if isbr:
                tgt = ins.ops[0]
                if tgt in labels and labels[tgt] < idx:
                    h = advance(hist, ins, 1)
                    extra = 0; dist = 0
                    for it2 in self.items[labels[tgt]:labels[tgt] + 40]:
                        if it2[0] != "i": continue
                        c = it2[1]
                        for p, age in h:
                            k = need(p, c) - age - dist
                            if k > extra: extra = k
                        dist += (int(c.ops[0]) + 1) if c.op == "s_nop" else 1
                        if dist >= WINDOW: break
                    pad(extra)
            states = (int(ins.ops[0], 0) + 1) if ins.op == "s_nop" else 1
            out.append("    " + ins.text)
            hist = [(p, a + states) for p, a in hist if a + states < WINDOW]
            hist.append((ins, 0))
            if isbr:
                tgt = ins.ops[0]
                if not (tgt in labels and labels[tgt] < idx):
                    saved.setdefault(tgt, []).append(list(hist))
                if ins.op == "s_branch": hist = []
            if ins.op == "s_endpgm": hist = []
        return "\n".join(out) + "\n"

class Regs:
    def __init__(self, kind, start, limit):
        self.kind, self.next, self.limit = kind, start, limit
        self.hw = start
    def alloc(self, n=1, align=None):
        if align is None: align = 1 if n == 1 else (2 if self.kind == "v" else (4 if n >= 4 else 2))
        self.next = (self.next + align - 1) // align * align
        r = self.next; self.next += n
        assert self.next <= self.limit, "out of %s regs" % self.kind
        self.hw = max(self.hw, self.next)
        return r
    def mark(self): return self.next
    def release(self, m): self.next = m

def v(i, n=1): return "v%d" % i if n == 1 else "v[%d:%d]" % (i, i + n - 1)
def s(i, n=1): return "s%d" % i if n == 1 else "s[%d:%d]" % (i, i + n - 1)
def fhex(x):
    import struct
    return "0x%08x" % struct.unpack("<I", struct.pack("<f", x))[0]
```

```python
import sys
from asmlib import *

NAME = "adaLN_cond__sliding_local_dilated__mixer_s_mlp__prompt"
MOD, CS1, CS3 = 0x0, 0x4000, 0x5000
ST2, ST1 = 0x10000, 0x30000
XH, OB, X2, HB, H1, X1, H2 = 0x100000, 0x300000, 0x500000, 0x700000, 0x900000, 0xB00000, 0xD00000
WQKV_P, WO_P, W1_P, W2_P, W3_P, W4_P = 0x1400000, 0x1580000, 0x1600000, 0x1680000, 0x1700000, 0x18C0000
WS_SIZE = 0x2000000
EPS = 1e-5
GC0 = -2.0 * 0.7978845608028654 * 1.4426950408889634
GC1 = GC0 * 0.044715
LOG2E = 1.4426950408889634

kernels = []
A = Asm()

def begin(name):
    A.T(".globl %s\n.p2align 8\n.type %s,@function" % (name, name))
    A.L(name)

def srd(d, lo, hi, size, off=0):
    if off:
        A.I("s_add_u32 s%d, s%d, 0x%x" % (d, lo, off))
        A.I("s_addc_u32 s%d, s%d, 0" % (d + 1, hi))
    else:
        A.I("s_mov_b32 s%d, s%d" % (d, lo))
        A.I("s_mov_b32 s%d, s%d" % (d + 1, hi))
    A.I("s_mov_b32 s%d, 0x%x" % (d + 2, size))
    A.I("s_mov_b32 s%d, 0x20000" % (d + 3))

def unpack(dst_lo, dst_hi, src):
    A.I("v_lshlrev_b32 v%d, 16, v%d" % (dst_lo, src))
    A.I("v_and_b32 v%d, 0xffff0000, v%d" % (dst_hi, src))

def k0():
    name = "k0_kernel"
    begin(name)
    NWG = 504
    A.I("s_cmp_ge_u32 s2, %d" % NWG)
    A.I("s_cbranch_scc1 k0_end")
    A.I("s_load_dwordx16 s[16:31], s[0:1], 0")
    A.I("s_load_dwordx4 s[32:35], s[0:1], 64")
    A.I("s_load_dwordx2 s[40:41], s[0:1], 96")
    A.I("v_lshrrev_b32 v1, 6, v0")
    A.I("v_and_b32 v2, 63, v0")
    A.I("v_readfirstlane_b32 s3, v1")
    A.I("s_waitcnt lgkmcnt(0)")
    srd(44, 40, 41, WS_SIZE)
    A.I("s_cmp_ge_u32 s2, 296")
    A.I("s_cbranch_scc1 k0_pack")
    A.I("s_cmp_ge_u32 s2, 168")
    A.I("s_cbranch_scc1 k0_ln")
    srd(60, 32, 33, 1024)
    A.I("s_cmp_ge_u32 s2, 112")
    A.I("s_cbranch_scc1 k0_g3")
    A.I("s_cmp_ge_u32 s2, 96")
    A.I("s_cbranch_scc1 k0_g1")
    srd(48, 34, 35, 512 * 6144)
    A.I("s_mov_b32 s52, 6144\ns_mov_b32 s53, s2\ns_mov_b32 s55, 0")
    A.I("s_lshl_b32 s54, s53, 7")
    A.I("s_lshr_b32 s57, s53, 4")
    A.I("s_mov_b32 s56, 0")
    A.I("s_cmp_eq_u32 s57, 1\ns_cselect_b32 s56, 1.0, s56")
    A.I("s_cmp_eq_u32 s57, 4\ns_cselect_b32 s56, 1.0, s56")
    A.I("s_branch k0_gemv")
    A.L("k0_g1")
    srd(48, 24, 25, 512 * 1024)
    A.I("s_mov_b32 s52, 1024\ns_sub_u32 s53, s2, 96\ns_mov_b32 s55, 1\ns_mov_b32 s56, 0")
    A.I("s_lshl_b32 s54, s53, 7\ns_add_u32 s54, s54, 0x%x" % CS1)
    A.I("s_branch k0_gemv")
    A.L("k0_g3")
    srd(48, 28, 29, 512 * 3584)
    A.I("s_mov_b32 s52, 3584\ns_sub_u32 s53, s2, 112\ns_mov_b32 s55, 1\ns_mov_b32 s56, 0")
    A.I("s_lshl_b32 s54, s53, 7\ns_add_u32 s54, s54, 0x%x" % CS3)
    A.L("k0_gemv")
    A.I("v_and_b32 v3, 3, v2")
    A.I("v_lshrrev_b32 v4, 2, v2")
    A.I("v_lshl_add_u32 v4, v1, 7, v4")
    A.I("v_mul_lo_u32 v5, v4, s52")
    A.I("v_lshl_add_u32 v5, v3, 4, v5")
    A.I("v_lshlrev_b32 v6, 1, v4")
    A.I("s_lshl_b32 s58, s52, 4")
    A.I("s_lshl_b32 s59, s53, 6")
    W = 16
    C = 8
    for i in range(8):
        A.I("buffer_load_ushort v%d, v6, s[60:63], 0 offen offset:%d" % (C + i, 32 * i))
    for i in range(8):
        A.I("buffer_load_dwordx4 %s, v5, s[48:51], s59 offen" % v(W + 4 * i, 4))
        if i < 7: A.I("s_add_u32 s59, s59, s58")
    A.I("s_cmp_eq_u32 s55, 1")
    A.I("s_cbranch_scc1 k0_ones")
    A.I("s_waitcnt vmcnt(8)")
    for i in range(8):
        c = C + i
        A.I("v_lshlrev_b32 v%d, 16, v%d" % (c, c))
        A.I("v_mul_f32 v48, %s, v%d" % (fhex(-LOG2E), c))
        A.I("v_exp_f32 v48, v48")
        A.I("v_add_f32 v48, 1.0, v48")
        A.I("v_rcp_f32 v48, v48")
        A.I("v_mul_f32 v%d, v%d, v48" % (c, c))
        A.I("v_cvt_pk_bf16_f32 v%d, v%d, v%d" % (c, c, c))
        A.I("v_and_b32 v%d, 0xffff0000, v%d" % (c, c))
    A.I("s_branch k0_fma")
    A.L("k0_ones")
    A.I("s_waitcnt vmcnt(8)")
    for i in range(8): A.I("v_mov_b32 v%d, 1.0" % (C + i))
    A.L("k0_fma")
    ACC = 52
    for i in range(8):
        A.I("s_waitcnt vmcnt(%d)" % (7 - i))
        for q in range(4):
            unpack(48, 49, W + 4 * i + q)
            if i == 0:
                A.I("v_mul_f32 v%d, v48, v%d" % (ACC + 2 * q, C))
                A.I("v_mul_f32 v%d, v49, v%d" % (ACC + 2 * q + 1, C))
            else:
                A.I("v_fmac_f32 v%d, v48, v%d" % (ACC + 2 * q, C + i))
                A.I("v_fmac_f32 v%d, v49, v%d" % (ACC + 2 * q + 1, C + i))
    for rot in (8, 4):
        for e in range(8):
            A.I("v_add_f32_dpp v%d, v%d, v%d row_ror:%d row_mask:0xf bank_mask:0xf" % (ACC + e, ACC + e, ACC + e, rot))
    A.I("v_lshrrev_b32 v7, 4, v0")
    A.I("v_lshlrev_b32 v7, 7, v7")
    A.I("v_lshl_add_u32 v7, v3, 5, v7")
    A.I("ds_write_b128 v7, %s" % v(ACC, 4))
    A.I("ds_write_b128 v7, %s offset:16" % v(ACC + 4, 4))
    A.I("s_waitcnt lgkmcnt(0)")
    A.I("s_barrier")
    A.I("v_cmp_gt_u32 vcc, 32, v0")
    A.I("s_and_saveexec_b64 s[64:65], vcc")
    A.I("s_cbranch_execz k0_end")
    A.I("v_lshlrev_b32 v7, 2, v0")
    for j in range(16):
        A.I("ds_read_b32 v%d, v7 offset:%d" % (16 + j, 128 * j))
    A.I("s_waitcnt lgkmcnt(0)")
    for st in (8, 4, 2, 1):
        for j in range(st):
            A.I("v_add_f32 v%d, v%d, v%d" % (16 + j, 16 + j, 16 + j + st))
    A.I("s_cmp_eq_u32 s55, 1")
    A.I("s_cbranch_scc1 k0_gst")
    A.I("v_cvt_pk_bf16_f32 v16, v16, v16")
    A.I("v_and_b32 v16, 0xffff0000, v16")
    A.I("v_add_f32 v16, s56, v16")
    A.I("v_cvt_pk_bf16_f32 v16, v16, v16")
    A.I("v_and_b32 v16, 0xffff0000, v16")
    A.L("k0_gst")
    A.I("buffer_store_dword v16, v7, s[44:47], s54 offen")
    A.I("s_endpgm")
    A.L("k0_ln")
    srd(48, 16, 17, 2048 * 1024)
    A.I("s_sub_u32 s53, s2, 168")
    A.I("s_lshl_b32 s54, s53, 14")
    A.I("v_lshrrev_b32 v3, 4, v0")
    A.I("v_and_b32 v4, 15, v0")
    A.I("v_lshlrev_b32 v5, 10, v3")
    A.I("v_lshl_add_u32 v5, v4, 4, v5")
    for i in range(4):
        A.I("buffer_load_dwordx4 %s, v5, s[48:51], s54 offen offset:%d" % (v(8 + 4 * i, 4), 256 * i))
    A.I("v_lshrrev_b32 v6, 2, v4")
    A.I("v_lshlrev_b32 v6, 10, v6")
    A.I("v_and_b32 v7, 3, v4")
    A.I("v_lshl_add_u32 v6, v7, 8, v6")
    A.I("v_lshl_add_u32 v6, v3, 4, v6")
    A.I("s_add_u32 s54, s54, 0x%x" % XH)
    A.I("s_waitcnt vmcnt(0)")
    F = 24
    for q in range(16): unpack(F + 2 * q, F + 2 * q + 1, 8 + q)
    A.I("v_pk_add_f32 v[56:57], %s, %s" % (v(F, 2), v(F + 2, 2)))
    for q in range(2, 16): A.I("v_pk_add_f32 v[56:57], v[56:57], %s" % v(F + 2 * q, 2))
    A.I("v_add_f32 v56, v56, v57")
    for rot in (8, 4, 2, 1):
        A.I("v_add_f32_dpp v56, v56, v56 row_ror:%d row_mask:0xf bank_mask:0xf" % rot)
    A.I("v_mul_f32 v56, %s, v56" % fhex(-1.0 / 512))
    A.I("v_mov_b32 v57, v56")
    for q in range(16): A.I("v_pk_add_f32 %s, %s, v[56:57]" % (v(F + 2 * q, 2), v(F + 2 * q, 2)))
    A.I("v_pk_mul_f32 v[58:59], %s, %s" % (v(F, 2), v(F, 2)))
    for q in range(1, 16): A.I("v_pk_fma_f32 v[58:59], %s, %s, v[58:59]" % (v(F + 2 * q, 2), v(F + 2 * q, 2)))
    A.I("v_add_f32 v58, v58, v59")
    for rot in (8, 4, 2, 1):
        A.I("v_add_f32_dpp v58, v58, v58 row_ror:%d row_mask:0xf bank_mask:0xf" % rot)
    A.I("v_mov_b32 v59, %s" % fhex(EPS))
    A.I("v_fmac_f32 v59, %s, v58" % fhex(1.0 / 512))
    A.I("v_rsq_f32 v58, v59")
    A.I("v_mov_b32 v59, v58")
    for q in range(16):
        A.I("v_pk_mul_f32 %s, %s, v[58:59]" % (v(F + 2 * q, 2), v(F + 2 * q, 2)))
        A.I("v_cvt_pk_bf16_f32 v%d, v%d, v%d" % (8 + q, F + 2 * q, F + 2 * q + 1))
    for i in range(4):
        A.I("buffer_store_dwordx4 %s, v6, s[44:47], s54 offen" % v(8 + 4 * i, 4))
        if i < 3: A.I("s_add_u32 s54, s54, 4096")
    A.I("s_endpgm")
    A.L("k0_pack")
    A.I("s_sub_u32 s4, s2, 296")
    A.I("s_lshl_b32 s4, s4, 2")
    A.I("s_add_u32 s4, s4, s3")
    A.I("v_lshrrev_b32 v3, 4, v2")
    A.I("v_and_b32 v4, 15, v2")
    A.I("v_lshlrev_b32 v6, 8, v3")
    def typeA(lbl, ptr, size_rows, base_unit, KS, dst, split):
        A.L(lbl)
        srd(48, ptr, ptr + 1, size_rows * 1024)
        A.I("s_mov_b32 s52, 1024")
        A.I("s_sub_u32 s5, s4, %d" % base_unit)
        A.I("s_and_b32 s54, s5, 3\ns_lshr_b32 s53, s5, 2")
        A.I("s_mov_b32 s55, %d\ns_mov_b32 s56, %d" % ((2, 16) if split else (3, 4)))
        A.I("s_mul_i32 s57, s54, %d" % (2 * KS))
        A.I("s_add_u32 s57, s57, s53\ns_lshl_b32 s57, s57, 12\ns_add_u32 s57, s57, 0x%x" % dst)
        A.I("s_add_u32 s58, s57, 1024")
        A.I("v_lshrrev_b32 v7, 3, v4")
        A.I("v_mul_u32_u24 v7, 0x%x, v7" % (KS * 4096))
        A.I("v_add_u32 v6, v6, v7")
        A.I("v_bfe_u32 v7, v4, 2, 1")
        A.I("v_lshl_add_u32 v6, v7, 11, v6")
        A.I("v_and_b32 v7, 3, v4")
        A.I("v_lshl_add_u32 v6, v7, 6, v6")
        A.I("s_branch k0_pk")
    A.I("s_cmp_ge_u32 s4, 608\ns_cbranch_scc1 k0_p4")
    A.I("s_cmp_ge_u32 s4, 384\ns_cbranch_scc1 k0_p3")
    A.I("s_cmp_ge_u32 s4, 320\ns_cbranch_scc1 k0_p2")
    A.I("s_cmp_ge_u32 s4, 256\ns_cbranch_scc1 k0_p1")
    A.I("s_cmp_ge_u32 s4, 192\ns_cbranch_scc1 k0_po")
    srd(48, 18, 19, 512 * 3072)
    A.I("s_mov_b32 s52, 3072")
    A.I("s_and_b32 s53, s4, 15\ns_lshr_b32 s54, s4, 4")
    A.I("s_mov_b32 s55, 3\ns_mov_b32 s56, 4")
    A.I("s_and_b32 s5, s54, 3\ns_mul_i32 s57, s5, 384")
    A.I("s_mul_i32 s5, s53, 6\ns_add_u32 s57, s57, s5")
    A.I("s_lshr_b32 s5, s54, 2\ns_lshl_b32 s5, s5, 1\ns_add_u32 s57, s57, s5")
    A.I("s_lshl_b32 s57, s57, 10\ns_add_u32 s57, s57, 0x%x" % WQKV_P)
    A.I("s_add_u32 s58, s57, 64")
    A.I("v_lshrrev_b32 v7, 2, v4")
    A.I("v_mul_u32_u24 v7, 0x18000, v7")
    A.I("v_add_u32 v6, v6, v7")
    A.I("v_bfe_u32 v7, v4, 1, 1")
    A.I("v_lshl_add_u32 v6, v7, 10, v6")
    A.I("v_and_b32 v7, 1, v4")
    A.I("v_lshl_add_u32 v6, v7, 7, v6")
    A.I("s_branch k0_pk")
    typeA("k0_po", 20, 512, 192, 16, WO_P, True)
    typeA("k0_p1", 24, 512, 256, 16, W1_P, False)
    typeA("k0_p2", 26, 512, 320, 16, W2_P, False)
    typeA("k0_p4", 30, 1792, 608, 56, W4_P, False)
    A.L("k0_p3")
    srd(48, 28, 29, 512 * 3584)
    A.I("s_mov_b32 s52, 3584")
    A.I("s_sub_u32 s5, s4, 384")
    A.I("s_and_b32 s53, s5, 15\ns_lshr_b32 s54, s5, 4")
    A.I("s_mov_b32 s55, 3\ns_mov_b32 s56, 4")
    A.I("s_mul_i32 s57, s53, 7168\ns_add_u32 s57, s57, 0x%x" % W3_P)
    A.I("v_and_b32 v7, 3, v4")
    A.I("v_lshl_add_u32 v6, v7, 6, v6")
    A.I("v_lshrrev_b32 v7, 2, v4")
    A.I("s_lshl_b32 s5, s54, 2")
    A.I("s_cmp_ge_u32 s54, 12\ns_cbranch_scc1 k0_p3b")
    A.I("v_add_u32 v7, s5, v7")
    A.I("v_mul_u32_u24 v8, 43, v7")
    A.I("v_lshrrev_b32 v8, 7, v8")
    A.I("v_mul_u32_u24 v9, 3, v8")
    A.I("v_sub_u32 v9, v7, v9")
    A.I("v_mul_u32_u24 v8, 0x1c000, v8")
    A.I("v_add_u32 v6, v6, v8")
    A.I("v_lshl_add_u32 v6, v9, 11, v6")
    A.I("s_add_u32 s58, s57, 1024")
    A.I("s_branch k0_pk")
    A.L("k0_p3b")
    A.I("s_sub_u32 s5, s5, 48")
    A.I("v_add_u32 v7, s5, v7")
    A.I("v_mul_u32_u24 v8, 0x38000, v7")
    A.I("v_add_u32 v6, v6, v8")
    A.I("s_add_u32 s57, s57, 6144")
    A.I("s_add_u32 s58, s57, 0x1c000")
    A.L("k0_pk")
    A.I("v_lshlrev_b32 v5, s55, v3")
    A.I("v_mul_lo_u32 v5, v5, s52")
    A.I("v_lshl_add_u32 v5, v4, 4, v5")
    A.I("s_lshl_b32 s5, s53, 5\ns_mul_i32 s5, s5, s52\ns_lshl_b32 s6, s54, 8\ns_add_u32 s5, s5, s6")
    A.I("s_mul_i32 s6, s56, s52\ns_add_u32 s6, s6, s5")
    R = 8
    for i in range(8):
        sr = 5 if i < 4 else 6
        A.I("buffer_load_dwordx4 %s, v5, s[48:51], s%d offen" % (v(R + 4 * i, 4), sr))
        A.I("s_add_u32 s%d, s%d, s52" % (sr, sr))
    A.I("s_mov_b32 s8, 0x05040100\ns_mov_b32 s9, 0x07060302")
    A.I("s_waitcnt vmcnt(0)")
    Fr = 40
    for j in range(8):
        for d in range(4):
            A.I("v_perm_b32 v%d, v%d, v%d, s%d" % (Fr + 4 * j + d, R + 4 * (2 * d + 1) + (j >> 1), R + 4 * (2 * d) + (j >> 1), 8 + (j & 1)))
        A.I("buffer_store_dwordx4 %s, v6, s[44:47], s%d offen offset:%d" % (v(Fr + 4 * j, 4), 57 if j < 4 else 58, (j & 3) * 16))
    A.L("k0_end")
    A.I("s_endpgm")
    kernels.append((name, NWG, 256, 2048, 72, 72, 0))

def prologue(name, need_ptrs):
    begin(name)
    A.I("s_cmp_ge_u32 s2, 256")
    A.I("s_cbranch_scc1 %s_end" % name)
    A.I("s_load_dwordx2 s[40:41], s[0:1], 96")
    for off, sr in need_ptrs:
        A.I("s_load_dwordx2 s[%d:%d], s[0:1], %d" % (sr, sr + 1, off))
    A.I("v_lshrrev_b32 v1, 6, v0")
    A.I("v_and_b32 v2, 63, v0")
    A.I("v_readfirstlane_b32 s3, v1")
    A.I("v_lshrrev_b32 v3, 4, v2")
    A.I("v_and_b32 v4, 15, v2")
    A.I("v_lshlrev_b32 v5, 4, v2")
    A.I("s_and_b32 s4, s2, 7\ns_lshr_b32 s5, s2, 3")

def map64():
    A.I("s_lshl_b32 s6, s4, 2\ns_lshr_b32 s9, s5, 3\ns_add_u32 s6, s6, s9\ns_and_b32 s7, s5, 7")
    A.I("s_lshl_b32 s8, s6, 2\ns_add_u32 s8, s8, s3")

def map128():
    A.I("s_lshr_b32 s6, s4, 1\ns_lshl_b32 s6, s6, 2\ns_lshr_b32 s9, s5, 3\ns_add_u32 s6, s6, s9")
    A.I("s_and_b32 s7, s4, 1\ns_lshl_b32 s7, s7, 3\ns_and_b32 s9, s5, 7\ns_add_u32 s7, s7, s9")
    A.I("s_lshl_b32 s8, s6, 3\ns_lshl_b32 s9, s3, 1\ns_add_u32 s8, s8, s9")

def dma_chunk(sW, sM, per, src_off, lds_off):
    for j0 in range(0, per, 4):
        A.I("s_add_u32 m0, s%d, %d" % (sM, lds_off + j0 * 1024))
        A.I("s_add_u32 s10, s%d, %d" % (sW, src_off + j0 * 1024))
        for j in range(j0, min(per, j0 + 4)):
            A.I("buffer_load_dwordx4 v5, s[44:47], s10 offen offset:%d lds" % ((j - j0) * 1024))
    return per

def reduce_pair_to_all(a, b, t):
    A.I("v_permlane32_swap_b32 v%d, v%d" % (a, b))
    A.I("v_add_f32 v%d, v%d, v%d" % (a, a, b))
    A.I("v_mov_b32 v%d, v%d" % (t, a))
    A.I("v_permlane16_swap_b32 v%d, v%d" % (a, t))
    A.I("v_add_f32 v%d, v%d, v%d" % (a, a, t))
    A.I("v_mov_b32 v%d, v%d" % (b, a))
    A.I("v_permlane32_swap_b32 v%d, v%d" % (a, b))

def reduce_pair_split(a, b, t):
    A.I("v_permlane32_swap_b32 v%d, v%d" % (a, b))
    A.I("v_add_f32 v%d, v%d, v%d" % (a, a, b))
    A.I("v_mov_b32 v%d, v%d" % (t, a))
    A.I("v_permlane16_swap_b32 v%d, v%d" % (a, t))
    A.I("v_add_f32 v%d, v%d, v%d" % (a, a, t))

def stats_finish(s1, s2, r, nmr, t):
    A.I("v_mul_f32 v%d, %s, v%d" % (s1, fhex(1.0 / 512), s1))
    A.I("v_mov_b32 v%d, %s" % (t, fhex(EPS)))
    A.I("v_fmac_f32 v%d, %s, v%d" % (t, fhex(1.0 / 512), s2))
    A.I("v_fma_f32 v%d, -v%d, v%d, v%d" % (t, s1, s1, t))
    A.I("v_max_f32 v%d, %s, v%d" % (t, fhex(EPS), t))
    A.I("v_rsq_f32 v%d, v%d" % (r, t))
    A.I("v_mov_b32 v%d, v%d" % (r + 1, r))
    A.I("v_mul_f32 v%d, v%d, v%d" % (nmr, s1, r))
    A.I("v_sub_f32 v%d, 0, v%d" % (nmr, nmr))
    A.I("v_mov_b32 v%d, v%d" % (nmr + 1, nmr))

def gelu_pairs(regs, t0, sC):
    n = len(regs)
    for i, r in enumerate(regs):
        t = t0 + 2 * i
        A.I("v_pk_mul_f32 %s, %s, %s" % (v(t, 2), v(r, 2), v(r, 2)))
    for i, r in enumerate(regs):
        t = t0 + 2 * i
        A.I("v_pk_fma_f32 %s, %s, %s, %s" % (v(t, 2), v(t, 2), s(sC, 2), v(GC0V, 2)))
    for i, r in enumerate(regs):
        t = t0 + 2 * i
        A.I("v_pk_mul_f32 %s, %s, %s" % (v(t, 2), v(t, 2), v(r, 2)))
    for i, r in enumerate(regs):
        t = t0 + 2 * i
        A.I("v_exp_f32 v%d, v%d" % (t, t))
        A.I("v_exp_f32 v%d, v%d" % (t + 1, t + 1))
    for i, r in enumerate(regs):
        t = t0 + 2 * i
        A.I("v_pk_add_f32 %s, %s, 1.0 op_sel_hi:[1,0]" % (v(t, 2), v(t, 2)))
    for i, r in enumerate(regs):
        t = t0 + 2 * i
        A.I("v_rcp_f32 v%d, v%d" % (t, t))
        A.I("v_rcp_f32 v%d, v%d" % (t + 1, t + 1))
    for i, r in enumerate(regs):
        t = t0 + 2 * i
        A.I("v_pk_mul_f32 %s, %s, %s" % (v(r, 2), v(r, 2), v(t, 2)))

GC0V = 6

def gemm64(name, KS, wbase, act_base, mode):
    ptrs = []
    if mode == "k2": ptrs = [(0, 16)]
    if mode == "k6": ptrs = [(80, 16)]
    prologue(name, ptrs)
    map64()
    V = Regs("v", 8, 256)
    acc = V.alloc(16, 4)
    wf = [V.alloc(16, 4), V.alloc(16, 4)]
    if KS > 16:
        act = 0
        AR = lambda ks: "a[%d:%d]" % (4 * ks, 4 * ks + 3)
    else:
        act = V.alloc(4 * KS, 4)
        AR = lambda ks: v(act + 4 * ks, 4)
    CH = 4 if KS == 16 else 8
    NCH = KS // CH
    per = CH
    SLOTS = NCH if KS == 16 else 4
    VEC_LDS = SLOTS * CH * 4096
    lds = VEC_LDS + (4096 if mode == "k3" else 0)
    A.I("s_mul_i32 s11, s7, %d" % (KS * 4096))
    A.I("s_mul_i32 s12, s3, %d" % (per * 1024))
    A.I("s_add_u32 s11, s11, s12\ns_add_u32 s11, s11, 0x%x" % wbase)
    A.I("s_mul_i32 s13, s8, %d" % (KS * 1024))
    A.I("s_lshl_b32 s14, s8, 4\ns_lshl_b32 s9, s7, 1\ns_add_u32 s14, s14, s9\ns_lshl_b32 s14, s14, 10")
    vg32 = V.alloc()
    if KS > 16:
        vhi[1] = V.alloc()
        A.I("v_add_u32 v%d, 0x10000, v5" % vhi[1])
    A.I("v_lshlrev_b32 v%d, 5, v3" % vg32)
    for t in range(4):
        for r in range(4): A.I("v_mov_b32 v%d, 0" % (acc + 4 * t + r))
    nvm = 0
    if mode == "k4":
        vq = V.alloc(4, 1)
        A.I("s_lshl_b32 s9, s8, 4")
        for q, d in enumerate((-1, 1, -2, 2)):
            t = vq + q
            A.I("v_add_u32 v%d, s9, v4" % t)
            A.I("v_add_u32 v%d, %d, v%d" % (t, d, t))
            A.I("v_cmp_gt_i32 vcc, 0, v%d" % t)
            A.I("v_and_b32 v6, 15, v%d" % t)
            A.I("v_lshrrev_b32 v%d, 4, v%d" % (t, t))
            A.I("v_lshlrev_b32 v%d, 14, v%d" % (t, t))
            A.I("v_lshl_add_u32 v%d, v6, 4, v%d" % (t, t))
            A.I("v_lshl_add_u32 v%d, v3, 8, v%d" % (t, t))
            A.I("v_add_u32 v%d, %d, v%d" % (t, q * 4096, t))
            A.I("v_mov_b32 v6, 0x7fff0000")
            A.I("v_cndmask_b32 v%d, v%d, v6, vcc" % (t, t))
    A.I("s_waitcnt lgkmcnt(0)")
    srd(44, 40, 41, WS_SIZE)
    if mode == "k4": srd(48, 40, 41, 0x200000, off=H1)
    if mode == "k2":
        srd(48, 16, 17, 2048 * 1024)
        res = V.alloc(8, 4); vec = V.alloc(16, 4); vx = V.alloc()
        A.I("v_lshlrev_b32 v%d, 10, v4" % vx)
        A.I("v_lshl_add_u32 v%d, v3, 4, v%d" % (vx, vx))
        A.I("s_lshl_b32 s9, s8, 14\ns_lshl_b32 s10, s7, 7\ns_add_u32 s9, s9, s10")
        for p in range(2):
            A.I("buffer_load_dwordx4 %s, v%d, s[48:51], s9 offen offset:%d" % (v(res + 4 * p, 4), vx, 64 * p)); nvm += 1
        A.I("s_lshl_b32 s9, s7, 8\ns_add_u32 s9, s9, 0x%x" % (MOD + 2 * 2048))
        for p in range(2):
            for h in range(2):
                A.I("buffer_load_dwordx4 %s, v%d, s[44:47], s9 offen offset:%d" % (v(vec + 8 * p + 4 * h, 4), vg32, 128 * p + 16 * h)); nvm += 1
    if mode == "k3":
        st = V.alloc(4, 4); vec = V.alloc(16, 4); vs = V.alloc()
        A.I("v_lshlrev_b32 v%d, 6, v4" % vs)
        A.I("v_lshl_add_u32 v%d, v3, 4, v%d" % (vs, vs))
        A.I("s_lshl_b32 s9, s8, 10\ns_add_u32 s9, s9, 0x%x" % ST2)
        A.I("buffer_load_dwordx4 %s, v%d, s[44:47], s9 offen" % (v(st, 4), vs)); nvm += 1
        A.I("s_lshl_b32 s9, s3, 10\ns_add_u32 m0, s9, %d\ns_add_u32 s9, s9, 0x%x" % (VEC_LDS, MOD + 3 * 2048))
        A.I("buffer_load_dwordx4 v5, s[44:47], s9 offen lds"); nvm += 1
        A.I("s_lshl_b32 s9, s7, 8\ns_add_u32 s9, s9, 0x%x" % CS1)
        for p in range(2):
            for h in range(2):
                A.I("buffer_load_dwordx4 %s, v%d, s[44:47], s9 offen offset:%d" % (v(vec + 8 * p + 4 * h, 4), vg32, 128 * p + 16 * h)); nvm += 1
    if mode == "k4":
        res = V.alloc(8, 4)
        A.I("s_add_u32 s9, s14, 0x%x" % HB)
        for p in range(2):
            A.I("buffer_load_dwordx4 %s, v5, s[44:47], s9 offen offset:%d" % (v(res + 4 * p, 4), 1024 * p)); nvm += 1
    if mode == "k6":
        srd(48, 16, 17, 2048 * 1024)
        res = V.alloc(8, 4); res2 = V.alloc(8, 4); vec = V.alloc(16, 4); vx = V.alloc()
        A.I("v_lshlrev_b32 v%d, 10, v4" % vx)
        A.I("v_lshl_add_u32 v%d, v3, 4, v%d" % (vx, vx))
        A.I("s_add_u32 s9, s14, 0x%x" % X1)
        for p in range(2):
            A.I("buffer_load_dwordx4 %s, v5, s[44:47], s9 offen offset:%d" % (v(res + 4 * p, 4), 1024 * p)); nvm += 1
        A.I("s_add_u32 s9, s14, 0x%x" % X2)
        for p in range(2):
            A.I("buffer_load_dwordx4 %s, v5, s[44:47], s9 offen offset:%d" % (v(res2 + 4 * p, 4), 1024 * p)); nvm += 1
        A.I("s_lshl_b32 s9, s7, 8\ns_add_u32 s9, s9, 0x%x" % (MOD + 5 * 2048))
        for p in range(2):
            for h in range(2):
                A.I("buffer_load_dwordx4 %s, v%d, s[44:47], s9 offen offset:%d" % (v(vec + 8 * p + 4 * h, 4), vg32, 128 * p + 16 * h)); nvm += 1
    npre = nvm
    A.I("s_add_u32 s13, s13, 0x%x" % act_base)
    done_at = {}
    def issue(c):
        nonlocal nvm
        nvm += dma_chunk(11, 12, per, c * CH * 4096, (c % SLOTS) * CH * 4096)
        for k0 in range(c * CH, (c + 1) * CH, 4):
            if mode != "k4": A.I("s_add_u32 s10, s13, %d" % (k0 * 1024))
            for ks in range(k0, k0 + 4):
                if mode == "k4":
                    A.I("buffer_load_dwordx4 %s, v%d, s[48:51], 0 offen offset:%d" % (AR(ks), vq + (ks >> 2), (ks & 3) * 1024))
                else:
                    A.I("buffer_load_dwordx4 %s, v5, s[44:47], s10 offen offset:%d" % (AR(ks), (ks & 3) * 1024))
                nvm += 1
        done_at[c] = nvm
    first = min(NCH, 3 if KS > 16 else NCH)
    for c in range(first): issue(c)
    issued = first
    if mode == "k3":
        r2 = V.alloc(2, 2); nm2 = V.alloc(2, 2); tt = V.alloc()
        hs1 = V.alloc(2, 2); hs2 = V.alloc(2, 2)
        f = V.alloc(8, 2); mv = V.alloc(16, 4); va = V.alloc()
        A.I("s_waitcnt vmcnt(%d)" % min(63, nvm - 1))
        A.I("v_add_f32 v%d, v%d, v%d" % (st, st, st + 2))
        A.I("v_add_f32 v%d, v%d, v%d" % (st + 1, st + 1, st + 3))
        reduce_pair_to_all(st, st + 1, tt)
        stats_finish(st, st + 1, r2, nm2, tt)
        for x in (hs1, hs1 + 1, hs2, hs2 + 1): A.I("v_mov_b32 v%d, 0" % x)
        A.I("v_add_u32 v%d, %d, v%d" % (va, VEC_LDS, vg32))
    for c in range(NCH):
        A.I("s_waitcnt vmcnt(%d)" % min(63, nvm - done_at[c]))
        A.I("s_barrier")
        if issued < NCH and (KS > 16):
            while issued < NCH and (issued < SLOTS or issued - SLOTS <= c - 1) and issued <= c + 3:
                issue(issued); issued += 1
        base = (c % SLOTS) * CH * 4096
        def rd(ks):
            b = wf[ks & 1]
            off = base + (ks - c * CH) * 4096
            for t in range(4):
                o = off + t * 1024
                if o <= 65535 - 0:
                    A.I("ds_read_b128 %s, v5 offset:%d" % (v(b + 4 * t, 4), o))
                else:
                    A.I("ds_read_b128 %s, v%d offset:%d" % (v(b + 4 * t, 4), vhi[o >> 16], o & 0xffff))
        if c == 0 and KS > 16:
            pass
        rd(c * CH)
        for ks in range(c * CH, (c + 1) * CH):
            last = ks == (c + 1) * CH - 1
            if mode == "k3":
                for h in range(2):
                    A.I("ds_read_b128 %s, v%d offset:%d" % (v(mv + 4 * h, 4), va, ks * 128 + 16 * h))
                    A.I("ds_read_b128 %s, v%d offset:%d" % (v(mv + 8 + 4 * h, 4), va, 2048 + ks * 128 + 16 * h))
                a = act + 4 * ks
                for q in range(4): unpack(f + 2 * q, f + 2 * q + 1, a + q)
                for q in range(4): A.I("v_pk_fma_f32 %s, %s, %s, %s" % (v(f + 2 * q, 2), v(f + 2 * q, 2), v(r2, 2), v(nm2, 2)))
                A.I("s_waitcnt lgkmcnt(0)")
                for q in range(4): A.I("v_pk_fma_f32 %s, %s, %s, %s" % (v(f + 2 * q, 2), v(f + 2 * q, 2), v(mv + 8 + 2 * q, 2), v(mv + 2 * q, 2)))
                for q in range(4): A.I("v_cvt_pk_bf16_f32 v%d, v%d, v%d" % (a + q, f + 2 * q, f + 2 * q + 1))
                for q in range(4):
                    A.I("v_pk_add_f32 %s, %s, %s" % (v(hs1, 2), v(hs1, 2), v(f + 2 * q, 2)))
                    A.I("v_pk_fma_f32 %s, %s, %s, %s" % (v(hs2, 2), v(f + 2 * q, 2), v(f + 2 * q, 2), v(hs2, 2)))
                if not last: rd(ks + 1)
            else:
                if not last:
                    rd(ks + 1)
                    A.I("s_waitcnt lgkmcnt(4)")
                else:
                    A.I("s_waitcnt lgkmcnt(0)")
            b = wf[ks & 1]
            for t in range(4):
                A.I("v_mfma_f32_16x16x32_bf16 %s, %s, %s, %s" % (v(acc + 4 * t, 4), v(b + 4 * t, 4), AR(ks), v(acc + 4 * t, 4)))
    y = V.alloc(16, 4); o = V.alloc(8, 4); s1 = V.alloc(2, 2); s2 = V.alloc(2, 2); t1 = V.alloc(16, 2)
    def store_stats(stbase):
        A.I("v_add_f32 v%d, v%d, v%d" % (s1, s1, s1 + 1))
        A.I("v_add_f32 v%d, v%d, v%d" % (s2, s2, s2 + 1))
        reduce_pair_split(s1, s2, t1)
        A.I("v_lshlrev_b32 v%d, 6, v4" % t1)
        A.I("v_lshrrev_b32 v%d, 1, v3" % (t1 + 1))
        A.I("v_lshl_add_u32 v%d, v%d, 2, v%d" % (t1, t1 + 1, t1))
        A.I("s_lshl_b32 s9, s8, 10\ns_lshl_b32 s10, s7, 3\ns_add_u32 s9, s9, s10\ns_add_u32 s9, s9, 0x%x" % stbase)
        A.I("buffer_store_dword v%d, v%d, s[44:47], s9 offen" % (s1, t1))
    def stats_acc():
        for q in range(8):
            if q == 0:
                A.I("v_pk_add_f32 %s, %s, %s" % (v(s1, 2), v(y, 2), v(y + 2, 2)))
                A.I("v_pk_mul_f32 %s, %s, %s" % (v(s2, 2), v(y, 2), v(y, 2)))
            else:
                if q > 1: A.I("v_pk_add_f32 %s, %s, %s" % (v(s1, 2), v(s1, 2), v(y + 2 * q, 2)))
                A.I("v_pk_fma_f32 %s, %s, %s, %s" % (v(s2, 2), v(y + 2 * q, 2), v(y + 2 * q, 2), v(s2, 2)))
    def pack_store(src, dstbase):
        for q in range(8): A.I("v_cvt_pk_bf16_f32 v%d, v%d, v%d" % (o + q, src + 2 * q, src + 2 * q + 1))
        A.I("s_add_u32 s9, s14, 0x%x" % dstbase)
        for p in range(2):
            A.I("buffer_store_dwordx4 %s, v5, s[44:47], s9 offen offset:%d" % (v(o + 4 * p, 4), 1024 * p))
    if mode == "k2":
        for q in range(8): unpack(y + 2 * q, y + 2 * q + 1, res + q)
        for q in range(8): A.I("v_pk_fma_f32 %s, %s, %s, %s" % (v(y + 2 * q, 2), v(acc + 2 * q, 2), v(vec + 2 * q, 2), v(y + 2 * q, 2)))
        pack_store(y, X2)
        stats_acc(); store_stats(ST2)
    if mode == "k4":
        for q in range(8): unpack(y + 2 * q, y + 2 * q + 1, res + q)
        for q in range(8): A.I("v_pk_add_f32 %s, %s, %s" % (v(y + 2 * q, 2), v(acc + 2 * q, 2), v(y + 2 * q, 2)))
        pack_store(y, X1)
        stats_acc(); store_stats(ST1)
    if mode == "k3":
        A.I("s_add_u32 s9, s14, 0x%x" % HB)
        for cb in range(8):
            A.I("s_cmp_lg_u32 s7, %d" % cb)
            A.I("s_cbranch_scc1 %s_h%d" % (name, cb))
            for p in range(2):
                A.I("buffer_store_dwordx4 %s, v5, s[44:47], s9 offen offset:%d" % (v(act + 4 * (2 * cb + p), 4), 1024 * p))
            A.L("%s_h%d" % (name, cb))
        A.I("v_add_f32 v%d, v%d, v%d" % (hs1, hs1, hs1 + 1))
        A.I("v_add_f32 v%d, v%d, v%d" % (hs2, hs2, hs2 + 1))
        reduce_pair_to_all(hs1, hs2, tt)
        stats_finish(hs1, hs2, r2, nm2, tt)
        A.I("v_mov_b32 v6, %s\nv_mov_b32 v7, %s" % (fhex(GC0), fhex(GC0)))
        A.I("s_mov_b32 s20, %s\ns_mov_b32 s21, %s" % (fhex(GC1), fhex(GC1)))
        for q in range(8): A.I("v_pk_mul_f32 %s, %s, %s" % (v(y + 2 * q, 2), v(vec + 2 * q, 2), v(nm2, 2)))
        for q in range(8): A.I("v_pk_fma_f32 %s, %s, %s, %s" % (v(y + 2 * q, 2), v(acc + 2 * q, 2), v(r2, 2), v(y + 2 * q, 2)))
        gelu_pairs([y + 2 * q for q in range(8)], t1, 20)
        pack_store(y, H1)
    if mode == "k6":
        for q in range(8): unpack(y + 2 * q, y + 2 * q + 1, res + q)
        for q in range(8): A.I("v_pk_add_f32 %s, %s, %s" % (v(y + 2 * q, 2), v(acc + 2 * q, 2), v(y + 2 * q, 2)))
        for q in range(8): unpack(t1 + 2 * q, t1 + 2 * q + 1, res2 + q)
        for q in range(8): A.I("v_pk_fma_f32 %s, %s, %s, %s" % (v(y + 2 * q, 2), v(y + 2 * q, 2), v(vec + 2 * q, 2), v(t1 + 2 * q, 2)))
        for q in range(8): A.I("v_cvt_pk_bf16_f32 v%d, v%d, v%d" % (o + q, y + 2 * q, y + 2 * q + 1))
        A.I("s_lshl_b32 s9, s8, 14\ns_lshl_b32 s10, s7, 7\ns_add_u32 s9, s9, s10")
        for p in range(2):
            A.I("buffer_store_dwordx4 %s, v%d, s[48:51], s9 offen offset:%d" % (v(o + 4 * p, 4), vx, 64 * p))
    A.L(name + "_end")
    A.I("s_endpgm")
    kernels.append((name, 256, 256, lds, V.hw, 64, 4 * KS if KS > 16 else 0))

vhi = {}

def lds_rd(dst, off):
    if off <= 65535:
        A.I("ds_read_b128 %s, v5 offset:%d" % (v(dst, 4), off))
    else:
        A.I("ds_read_b128 %s, v%d offset:%d" % (v(dst, 4), vhi[off >> 16], off & 0xffff))

def k5():
    name = "k5_kernel"
    prologue(name, [])
    map128()
    V = Regs("v", 8, 256)
    NT, KS, CH = 7, 16, 4
    acc = V.alloc(56, 4)
    wf = [V.alloc(28, 4), V.alloc(28, 4)]
    AR = lambda m, ks: "a[%d:%d]" % (64 * m + 4 * ks, 64 * m + 4 * ks + 3)
    per = NT
    lds = KS * NT * 1024
    A.I("s_mul_i32 s11, s7, %d" % (KS * NT * 1024))
    A.I("s_mul_i32 s12, s3, %d" % (per * 1024))
    A.I("s_add_u32 s11, s11, s12\ns_add_u32 s11, s11, 0x%x" % W3_P)
    A.I("s_lshl_b32 s13, s8, 14\ns_add_u32 s13, s13, 0x%x" % X1)
    vg32 = V.alloc(); vhi[1] = V.alloc(); vs = V.alloc()
    A.I("v_add_u32 v%d, 0x10000, v5" % vhi[1])
    A.I("v_lshlrev_b32 v%d, 5, v3" % vg32)
    A.I("v_lshlrev_b32 v%d, 6, v4" % vs)
    A.I("v_lshl_add_u32 v%d, v3, 4, v%d" % (vs, vs))
    for r in range(56): A.I("v_mov_b32 v%d, 0" % (acc + r))
    st = V.alloc(8, 4); vec = V.alloc(28, 4)
    A.I("s_waitcnt lgkmcnt(0)")
    srd(44, 40, 41, WS_SIZE)
    nvm = 0
    A.I("s_lshl_b32 s9, s8, 10\ns_add_u32 s9, s9, 0x%x" % ST1)
    for m in range(2):
        A.I("buffer_load_dwordx4 %s, v%d, s[44:47], s9 offen offset:%d" % (v(st + 4 * m, 4), vs, 1024 * m)); nvm += 1
    A.I("s_mul_i32 s9, s7, 384\ns_add_u32 s9, s9, 0x%x" % CS3)
    for p in range(3):
        for h in range(2):
            A.I("buffer_load_dwordx4 %s, v%d, s[44:47], s9 offen offset:%d" % (v(vec + 8 * p + 4 * h, 4), vg32, 128 * p + 16 * h)); nvm += 1
    A.I("s_lshr_b32 s15, s7, 1\ns_add_u32 s15, s15, 48\ns_and_b32 s16, s7, 1")
    A.I("s_lshl_b32 s9, s15, 7\ns_lshl_b32 s10, s16, 4\ns_add_u32 s9, s9, s10\ns_add_u32 s9, s9, 0x%x" % CS3)
    A.I("buffer_load_dwordx4 %s, v%d, s[44:47], s9 offen" % (v(vec + 24, 4), vg32)); nvm += 1
    done_at = {}
    NCH = KS // CH
    def issue(c):
        nonlocal nvm
        nvm += dma_chunk(11, 12, per, c * CH * NT * 1024, c * CH * NT * 1024)
        for m in range(2):
            A.I("s_add_u32 s10, s13, %d" % (m * 16384 + c * CH * 1024))
            for ks in range(c * CH, (c + 1) * CH):
                A.I("buffer_load_dwordx4 %s, v5, s[44:47], s10 offen offset:%d" % (AR(m, ks), (ks & 3) * 1024)); nvm += 1
        done_at[c] = nvm
    for c in range(3): issue(c)
    r2 = [V.alloc(2, 2), V.alloc(2, 2)]; nm2 = [V.alloc(2, 2), V.alloc(2, 2)]; tt = V.alloc()
    A.I("s_waitcnt vmcnt(%d)" % (nvm - 2))
    for m in range(2):
        a = st + 4 * m
        A.I("v_add_f32 v%d, v%d, v%d" % (a, a, a + 2))
        A.I("v_add_f32 v%d, v%d, v%d" % (a + 1, a + 1, a + 3))
        reduce_pair_to_all(a, a + 1, tt)
        stats_finish(a, a + 1, r2[m], nm2[m], tt)
    for c in range(NCH):
        A.I("s_waitcnt vmcnt(%d)" % min(63, nvm - done_at[c]))
        A.I("s_barrier")
        if c == 0: issue(3)
        def rd(ks):
            for t in range(NT): lds_rd(wf[ks & 1] + 4 * t, (ks * NT + t) * 1024)
        rd(c * CH)
        for ks in range(c * CH, (c + 1) * CH):
            last = ks == (c + 1) * CH - 1
            if not last:
                rd(ks + 1); A.I("s_waitcnt lgkmcnt(%d)" % NT)
            else:
                A.I("s_waitcnt lgkmcnt(0)")
            b = wf[ks & 1]
            for t in range(NT):
                for m in range(2):
                    a = acc + (m * NT + t) * 4
                    A.I("v_mfma_f32_16x16x32_bf16 %s, %s, %s, %s" % (v(a, 4), v(b + 4 * t, 4), AR(m, ks), v(a, 4)))
    t1 = wf[0]; o = wf[1]
    A.I("v_mov_b32 v6, %s\nv_mov_b32 v7, %s" % (fhex(GC0), fhex(GC0)))
    A.I("s_mov_b32 s20, %s\ns_mov_b32 s21, %s" % (fhex(GC1), fhex(GC1)))
    A.I("s_mul_i32 s9, s8, %d\ns_add_u32 s9, s9, 0x%x" % (56 * 1024, H2))
    A.I("s_mul_i32 s10, s7, 3072\ns_add_u32 s17, s9, s10")
    A.I("s_lshl_b32 s10, s15, 10\ns_add_u32 s18, s9, s10\ns_lshl_b32 s10, s16, 3\ns_add_u32 s18, s18, s10")
    for m in range(2):
        a0 = acc + m * NT * 4
        for q in range(14): A.I("v_pk_mul_f32 %s, %s, %s" % (v(t1 + 2 * q, 2), v(vec + 2 * q, 2), v(nm2[m], 2)))
        for q in range(14): A.I("v_pk_fma_f32 %s, %s, %s, %s" % (v(a0 + 2 * q, 2), v(a0 + 2 * q, 2), v(r2[m], 2), v(t1 + 2 * q, 2)))
        gelu_pairs([a0 + 2 * q for q in range(14)], t1, 20)
        oo = o + 14 * m if m == 0 else o + 14
        oo = o if m == 0 else o + 14
        for q in range(14): A.I("v_cvt_pk_bf16_f32 v%d, v%d, v%d" % (oo + q, a0 + 2 * q, a0 + 2 * q + 1))
        for p in range(3):
            A.I("buffer_store_dwordx4 %s, v5, s[44:47], s17 offen offset:%d" % (v(oo + 4 * p, 4), 1024 * p))
        A.I("buffer_store_dwordx2 %s, v5, s[44:47], s18 offen" % v(oo + 12, 2))
        if m == 0:
            A.I("s_add_u32 s17, s17, %d\ns_add_u32 s18, s18, %d" % (56 * 1024, 56 * 1024))
    A.L(name + "_end")
    A.I("s_endpgm")
    kernels.append((name, 256, 256, lds, V.hw, 64, 128))

def k1():
    name = "k1_kernel"
    prologue(name, [])
    map128()
    V = Regs("v", 8, 256)
    NT, KS, CH = 6, 16, 4
    NCH = KS // CH
    acc = V.alloc(48, 4)
    hacc = V.alloc(4, 4)
    wf = [V.alloc(24, 4), V.alloc(24, 4)]
    hx = V.alloc(4, 4); hy = V.alloc(4, 4)
    mv = V.alloc(16, 4)
    f = V.alloc(16, 2)
    hb = [V.alloc(4, 4), V.alloc(4, 4)]
    hal = V.alloc(16, 4)
    AR = lambda m, ks: 64 * m + 4 * ks
    W_LDS = 0; HALO_LDS = KS * NT * 1024; VEC_LDS = HALO_LDS + 16384; X_LDS = VEC_LDS + 4096
    lds = X_LDS + 5 * 2048
    per = NT
    A.I("s_mul_i32 s11, s7, %d" % (KS * NT * 1024))
    A.I("s_mul_i32 s12, s3, %d" % (per * 1024))
    A.I("s_add_u32 s11, s11, s12\ns_add_u32 s11, s11, 0x%x" % WQKV_P)
    A.I("s_lshl_b32 s13, s8, 14\ns_add_u32 s13, s13, 0x%x" % XH)
    A.I("s_lshl_b32 s15, s6, 3\ns_max_u32 s15, s15, 1\ns_sub_u32 s15, s15, 1")
    A.I("s_lshl_b32 s15, s15, 14\ns_lshl_b32 s9, s3, 12\ns_add_u32 s15, s15, s9\ns_add_u32 s15, s15, 0x%x" % XH)
    vhi[1] = V.alloc(); va = V.alloc(); vX = V.alloc(); vY = V.alloc(); vah = V.alloc(); vhw = V.alloc()
    A.I("v_add_u32 v%d, 0x10000, v5" % vhi[1])
    A.I("v_lshlrev_b32 v%d, 5, v3" % va)
    A.I("v_add_u32 v%d, %d, v%d" % (va, VEC_LDS, va))
    A.I("s_add_u32 s9, s3, 2\ns_lshl_b32 s9, s9, 10")
    A.I("v_add_u32 v%d, s9, v5" % vX)
    A.I("v_add_u32 v%d, %d, v5" % (vY, HALO_LDS))
    A.I("v_add_u32 v%d, 0x10000, v%d" % (vhw, vX))
    A.I("s_lshl_b32 s9, s3, 9")
    A.I("v_add_u32 v%d, s9, v%d" % (vah, va))
    for r in range(48): A.I("v_mov_b32 v%d, 0" % (acc + r))
    for r in range(4): A.I("v_mov_b32 v%d, 0" % (hacc + r))
    A.I("s_waitcnt lgkmcnt(0)")
    srd(44, 40, 41, WS_SIZE)
    nvm = 0
    A.I("s_lshl_b32 s9, s3, 10\ns_add_u32 m0, s9, %d\ns_add_u32 s9, s9, 0x%x" % (VEC_LDS, MOD))
    A.I("buffer_load_dwordx4 v5, s[44:47], s9 offen lds"); nvm += 1
    for j in range(4):
        A.I("buffer_load_dwordx4 %s, v5, s[44:47], s15 offen offset:%d" % (v(hal + 4 * j, 4), j * 1024)); nvm += 1
    npre = nvm
    done_at = {}
    def issue(c):
        nonlocal nvm
        nvm += dma_chunk(11, 12, per, c * CH * NT * 1024, c * CH * NT * 1024)
        for m in range(2):
            A.I("s_add_u32 s10, s13, %d" % (m * 16384 + c * CH * 1024))
            for ks in range(c * CH, (c + 1) * CH):
                a = AR(m, ks)
                A.I("buffer_load_dwordx4 a[%d:%d], v5, s[44:47], s10 offen offset:%d" % (a, a + 3, (ks & 3) * 1024)); nvm += 1
        done_at[c] = nvm
    for c in range(4): issue(c)
    assert nvm <= 63
    A.I("s_waitcnt vmcnt(%d)" % (nvm - npre))
    A.I("s_barrier")
    def modulate(srcs, dst, fo):
        for q in range(4):
            A.I("v_lshlrev_b32 v%d, 16, %s" % (fo + 2 * q, srcs[q]))
            A.I("v_and_b32 v%d, 0xffff0000, %s" % (fo + 2 * q + 1, srcs[q]))
        for q in range(4): A.I("v_pk_fma_f32 %s, %s, %s, %s" % (v(fo + 2 * q, 2), v(fo + 2 * q, 2), v(mv + 8 + 2 * q, 2), v(mv + 2 * q, 2)))
        for q in range(4): A.I("v_cvt_pk_bf16_f32 v%d, v%d, v%d" % (dst + q, fo + 2 * q, fo + 2 * q + 1))
    def rd_vec(addr, ks):
        for h in range(2):
            A.I("ds_read_b128 %s, v%d offset:%d" % (v(mv + 4 * h, 4), addr, ks * 128 + 16 * h))
            A.I("ds_read_b128 %s, v%d offset:%d" % (v(mv + 8 + 4 * h, 4), addr, 2048 + ks * 128 + 16 * h))
    vw = V.alloc()
    A.I("s_lshl_b32 s9, s3, 12")
    A.I("v_add_u32 v%d, s9, v%d" % (vw, vY))
    for j in range(4):
        rd_vec(vah, j)
        A.I("s_waitcnt lgkmcnt(0)")
        modulate(["v%d" % (hal + 4 * j + q) for q in range(4)], hal + 4 * j, f)
        A.I("ds_write_b128 v%d, %s offset:%d" % (vw, v(hal + 4 * j, 4), j * 1024))
    A.I("s_waitcnt lgkmcnt(0)")
    tmp = V.alloc(4, 4)
    for c in range(NCH):
        A.I("s_waitcnt vmcnt(%d)" % (nvm - done_at[c]))
        A.I("s_barrier")
        def rd(ks):
            for t in range(NT): lds_rd(wf[ks & 1] + 4 * t, (ks * NT + t) * 1024)
        rd(c * CH)
        for ks in range(c * CH, (c + 1) * CH):
            last = ks == (c + 1) * CH - 1
            rd_vec(va, ks)
            o = ks * 6144
            if o <= 65535: A.I("ds_read_b128 %s, v%d offset:%d" % (v(hx, 4), vX, o))
            else: A.I("ds_read_b128 %s, v%d offset:%d" % (v(hx, 4), vhw, o - 65536))
            A.I("ds_read_b128 %s, v%d offset:%d" % (v(hy, 4), vY, ks * 1024))
            for m in range(2):
                for q in range(4): A.I("v_accvgpr_read_b32 v%d, a%d" % (hb[m] + q, AR(m, ks) + q))
            A.I("s_waitcnt lgkmcnt(0)")
            for m in range(2):
                modulate(["v%d" % (hb[m] + q) for q in range(4)], hb[m], f + 8 * m)
            if not last: rd(ks + 1)
            b = wf[ks & 1]
            for t in range(NT):
                for m in range(2):
                    a = acc + (m * NT + t) * 4
                    if t < 4:
                        A.I("v_mfma_f32_16x16x32_bf16 %s, %s, %s, %s" % (v(a, 4), v(b + 4 * t, 4), v(hb[m], 4), v(a, 4)))
                    else:
                        A.I("v_mfma_f32_16x16x32_bf16 %s, %s, %s, %s" % (v(a, 4), v(hb[m], 4), v(b + 4 * t, 4), v(a, 4)))
            lbl = "%s_hv%d" % (name, ks)
            A.I("s_cmp_ge_u32 s3, 2")
            A.I("s_cbranch_scc1 %s" % lbl)
            A.I("v_mfma_f32_16x16x32_bf16 %s, %s, %s, %s" % (v(hacc, 4), v(hx, 4), v(hy, 4), v(hacc, 4)))
            A.I("s_branch %s_e" % lbl)
            A.L(lbl)
            A.I("v_mfma_f32_16x16x32_bf16 %s, %s, %s, %s" % (v(hacc, 4), v(hy, 4), v(hx, 4), v(hacc, 4)))
            A.L(lbl + "_e")
    Kp = [V.alloc(6, 2), V.alloc(6, 2)]
    Vp = [V.alloc(6, 2), V.alloc(6, 2)]
    Qp = V.alloc(8, 2)
    def pk(dst, src):
        A.I("v_cvt_pk_bf16_f32 v%d, v%d, v%d" % (dst, src, src + 1))
        A.I("v_cvt_pk_bf16_f32 v%d, v%d, v%d" % (dst + 1, src + 2, src + 3))
    for m in range(2):
        for hh in range(2):
            pk(Qp + 4 * m + 2 * hh, acc + (m * NT + hh) * 4)
            pk(Kp[hh] + 2 * (m + 1), acc + (m * NT + 2 + hh) * 4)
            pk(Vp[hh] + 2 * (m + 1), acc + (m * NT + 4 + hh) * 4)
    pk(tmp, hacc)
    vx = vw
    A.I("v_lshlrev_b32 v%d, 3, v2" % vx)
    A.I("v_add_u32 v%d, %d, v%d" % (vx, X_LDS, vx))
    A.I("s_lshl_b32 s9, s3, 9")
    A.I("v_add_u32 v%d, s9, v%d" % (vX, vx))
    A.I("ds_write_b64 v%d, %s" % (vX, v(tmp, 2)))
    A.I("s_lshl_b32 s9, s3, 11")
    A.I("v_add_u32 v%d, s9, v%d" % (vY, vx))
    for hh in range(2):
        A.I("ds_write_b64 v%d, %s offset:%d" % (vY, v(Kp[hh] + 4, 2), 2048 + 512 * hh))
        A.I("ds_write_b64 v%d, %s offset:%d" % (vY, v(Vp[hh] + 4, 2), 2048 + 1024 + 512 * hh))
    A.I("s_waitcnt lgkmcnt(0)")
    A.I("s_barrier")
    for hh in range(2):
        A.I("ds_read_b64 %s, v%d offset:%d" % (v(Kp[hh], 2), vY, 512 * hh))
        A.I("ds_read_b64 %s, v%d offset:%d" % (v(Vp[hh], 2), vY, 1024 + 512 * hh))
    t0 = f
    A.I("v_and_b32 v%d, 1, v4" % t0)
    A.I("v_cmp_eq_u32 s[20:21], 1, v%d" % t0)
    A.I("v_lshl_add_u32 v%d, v3, 2, v%d" % (t0 + 1, t0))
    A.I("v_cmp_le_u32 s[22:23], v%d, v4" % (t0 + 1))
    A.I("v_add_u32 v%d, 2, v%d" % (t0 + 1, t0 + 1))
    A.I("v_cmp_le_u32 s[24:25], v%d, v4" % (t0 + 1))
    A.I("s_cmp_eq_u32 s8, 0")
    A.I("s_cselect_b64 s[26:27], -1, 0")
    M = mv
    A.I("v_mov_b32 v%d, 0xffff" % t0)
    A.I("v_mov_b32 v%d, 0xffff0000" % (t0 + 1))
    A.I("v_cndmask_b32 v%d, v%d, v%d, s[20:21]" % (t0, t0, t0 + 1))
    A.I("v_cndmask_b32 v%d, v%d, 0, s[22:23]" % (M, t0))
    A.I("v_cndmask_b32 v%d, v%d, 0, s[24:25]" % (M + 1, t0))
    A.I("v_cndmask_b32 v%d, 0, v%d, s[22:23]" % (M + 2, t0))
    A.I("v_cndmask_b32 v%d, 0, v%d, s[24:25]" % (M + 3, t0))
    NEG = mv + 4
    A.I("v_mov_b32 v%d, %s" % (NEG, fhex(-4.0e9)))
    A.I("s_mov_b32 s28, %s" % fhex(0.25 * LOG2E))
    A.I("s_waitcnt lgkmcnt(0)")
    S = wf[0]
    assert wf[1] == wf[0] + 24
    combos = [(m, hh) for m in range(2) for hh in range(2)]
    for i, (m, hh) in enumerate(combos):
        q = Qp + 4 * m + 2 * hh
        A.I("v_mfma_f32_16x16x16_bf16 %s, %s, %s, 0" % (v(S + 8 * i, 4), v(Kp[hh] + 2 * m, 2), v(q, 2)))
        A.I("v_mfma_f32_16x16x16_bf16 %s, %s, %s, 0" % (v(S + 8 * i + 4, 4), v(Kp[hh] + 2 * m + 2, 2), v(q, 2)))
    T = acc
    def each(fn):
        for i in range(4): fn(i, S + 8 * i, T + 8 * i)
    def sel(i, sb, t):
        A.I("v_cndmask_b32 v%d, v%d, v%d, s[20:21]" % (t, sb, sb + 1))
        A.I("v_cndmask_b32 v%d, v%d, v%d, s[20:21]" % (t + 1, sb + 2, sb + 3))
        A.I("v_cndmask_b32 v%d, v%d, v%d, s[20:21]" % (t + 2, sb + 4, sb + 5))
        A.I("v_cndmask_b32 v%d, v%d, v%d, s[20:21]" % (t + 3, sb + 6, sb + 7))
        if combos[i][0] == 0:
            A.I("v_cndmask_b32 v%d, v%d, v%d, s[26:27]" % (t, t, NEG))
            A.I("v_cndmask_b32 v%d, v%d, v%d, s[26:27]" % (t + 1, t + 1, NEG))
        A.I("v_cndmask_b32 v%d, v%d, v%d, s[22:23]" % (t, t, t + 2))
        A.I("v_cndmask_b32 v%d, v%d, v%d, s[24:25]" % (t + 1, t + 1, t + 3))
        A.I("v_max_f32 v%d, v%d, v%d" % (t + 2, t, t + 1))
        A.I("v_mov_b32 v%d, v%d" % (t + 3, t + 2))
    each(sel)
    each(lambda i, sb, t: A.I("v_permlane32_swap_b32 v%d, v%d" % (t + 2, t + 3)))
    each(lambda i, sb, t: A.I("v_max_f32 v%d, v%d, v%d\nv_mov_b32 v%d, v%d" % (t + 2, t + 2, t + 3, t + 3, t + 2)))
    each(lambda i, sb, t: A.I("v_permlane16_swap_b32 v%d, v%d" % (t + 2, t + 3)))
    def ex(i, sb, t):
        A.I("v_max_f32 v%d, v%d, v%d" % (t + 2, t + 2, t + 3))
        A.I("v_sub_f32 v%d, v%d, v%d" % (t, t, t + 2))
        A.I("v_sub_f32 v%d, v%d, v%d" % (t + 1, t + 1, t + 2))
        A.I("v_mul_f32 v%d, s28, v%d" % (t, t))
        A.I("v_mul_f32 v%d, s28, v%d" % (t + 1, t + 1))
        A.I("v_exp_f32 v%d, v%d" % (t, t))
        A.I("v_exp_f32 v%d, v%d" % (t + 1, t + 1))
    each(ex)
    each(lambda i, sb, t: A.I("v_add_f32 v%d, v%d, v%d\nv_mov_b32 v%d, v%d" % (t + 2, t, t + 1, t + 3, t + 2)))
    each(lambda i, sb, t: A.I("v_permlane32_swap_b32 v%d, v%d" % (t + 2, t + 3)))
    each(lambda i, sb, t: A.I("v_add_f32 v%d, v%d, v%d\nv_mov_b32 v%d, v%d" % (t + 2, t + 2, t + 3, t + 3, t + 2)))
    each(lambda i, sb, t: A.I("v_permlane16_swap_b32 v%d, v%d" % (t + 2, t + 3)))
    each(lambda i, sb, t: A.I("v_add_f32 v%d, v%d, v%d" % (t + 2, t + 2, t + 3)))
    each(lambda i, sb, t: A.I("v_rcp_f32 v%d, v%d" % (t + 2, t + 2)))
    def pp(i, sb, t):
        A.I("v_mul_f32 v%d, v%d, v%d" % (t, t, t + 2))
        A.I("v_mul_f32 v%d, v%d, v%d" % (t + 1, t + 1, t + 2))
        A.I("v_cvt_pk_bf16_f32 v%d, v%d, v%d" % (t, t, t))
        A.I("v_cvt_pk_bf16_f32 v%d, v%d, v%d" % (t + 1, t + 1, t + 1))
        A.I("v_and_b32 v%d, v%d, v%d" % (t + 4, t, M))
        A.I("v_and_b32 v%d, v%d, v%d" % (t + 5, t + 1, M + 1))
        A.I("v_and_b32 v%d, v%d, v%d" % (t + 6, t, M + 2))
        A.I("v_and_b32 v%d, v%d, v%d" % (t + 7, t + 1, M + 3))
    each(pp)
    for i, (m, hh) in enumerate(combos):
        A.I("v_mfma_f32_16x16x32_bf16 %s, %s, %s, 0" % (v(S + 8 * i, 4), v(Vp[hh] + 2 * m, 4), v(T + 8 * i + 4, 4)))
    A.I("s_lshl_b32 s9, s8, 4\ns_add_u32 s9, s9, s7\ns_lshl_b32 s9, s9, 10\ns_add_u32 s9, s9, 0x%x" % OB)
    for m in range(2):
        o = hb[m]
        for hh in range(2): pk(o + 2 * hh, S + 8 * (2 * m + hh))
        A.I("buffer_store_dwordx4 %s, v5, s[44:47], s9 offen" % v(o, 4))
        if m == 0: A.I("s_add_u32 s9, s9, 16384")
    A.L(name + "_end")
    A.I("s_endpgm")
    kernels.append((name, 256, 256, lds, V.hw, 64, 128))

def main(out, extra_empty=0):
    k0(); k1()
    gemm64("k2_kernel", 16, WO_P, OB, "k2")
    gemm64("k3_kernel", 16, W1_P, X2, "k3")
    gemm64("k4_kernel", 16, W2_P, H1, "k4")
    k5()
    gemm64("k6_kernel", 56, W4_P, H2, "k6")
    launches = list(kernels)
    if extra_empty:
        begin("nop_kernel"); A.I("s_endpgm")
        kernels.append(("nop_kernel", 256, 256, 0, 8, 16, 0))
        launches += [kernels[-1]] * extra_empty
    hdr = open("cdna_kernels/%s.s.ref" % NAME).read().split("; Override launch")[0]
    txt = hdr
    for k in launches:
        txt += "; @launch kernel=%s grid=(%d,1,1) block=(%d,1,1) lds=%d\n" % (k[0], k[1], k[2], k[3])
    txt += '.amdgcn_target "amdgcn-amd-amdhsa--gfx950"\n.text\n'
    txt += A.render()
    txt += '.section .rodata,"a"\n'
    for (n, g, b, lds, nv, ns, na) in kernels:
        ao = (nv + 3) // 4 * 4
        txt += ".p2align 6\n.amdhsa_kernel %s\n  .amdhsa_next_free_vgpr %d\n  .amdhsa_next_free_sgpr %d\n  .amdhsa_accum_offset %d\n" % (n, ao + na if na else nv, ns, ao)
        txt += "  .amdhsa_group_segment_fixed_size 0\n  .amdhsa_kernarg_size 104\n  .amdhsa_user_sgpr_count 2\n  .amdhsa_user_sgpr_kernarg_segment_ptr 1\n  .amdhsa_system_sgpr_workgroup_id_x 1\n"
        txt += "  .amdhsa_float_denorm_mode_32 3\n.end_amdhsa_kernel\n"
    open(out, "w").write(txt)

if __name__ == "__main__":
    out = sys.argv[1] if len(sys.argv) > 1 else "cdna_kernels/%s.s" % NAME
    main(out, int(sys.argv[2]) if len(sys.argv) > 2 else 0)
```
